```python
import torch

def _softmax(x, axis=-1):
    return torch.softmax(x, dim=axis)
def _gelu(x):
    return torch.nn.functional.gelu(x, approximate="tanh")
def _silu(x):
    return torch.nn.functional.silu(x)
def _sigmoid(x):
    return torch.sigmoid(x)
def _layernorm(x, axis=-1, eps=1e-5):
    m = x.mean(dim=axis, keepdim=True)
    v = x.var(dim=axis, keepdim=True, unbiased=False)
    return (x - m) / torch.sqrt(v + eps)
def _scatter_add(tgt, idx, src, axis=0):
    return tgt.clone().index_add_(axis, idx, src)
def _segment_sum(src, seg, n):
    out = torch.zeros((n,) + src.shape[1:], dtype=src.dtype)
    return out.index_add_(0, seg, src)
def _pad(x, pw):
    flat = tuple(v for pair in reversed(pw) for v in pair)
    return torch.nn.functional.pad(x, flat)

kernel_name = 'recurrent_scan__gqa_block_cached__dense_activation_squared_relu__decode'

def setup_inputs():

    _w = (lambda a: (lambda t: t.to(torch.bfloat16) if t.is_floating_point() else t)(torch.as_tensor(a)))
    def _A_setup():
        B, Sq, D = 4, 1, 512
        Hq, Hkv, Sk, Dh = 32, 8, 16384, 128
        assert Hq % Hkv == 0, (Hq, Hkv)
        return {
            "x": _w((lambda *s: torch.randn(*s, dtype=torch.bfloat16) * 0.05)(B, Sq, D)),
            "k_cache": _w((lambda *s: torch.randn(*s, dtype=torch.bfloat16) * 1.6)(B, Hkv, Sk, Dh)),
            "v_cache": _w((lambda *s: torch.randn(*s, dtype=torch.bfloat16) * 0.2)(B, Hkv, Sk, Dh)),
            "wq": _w((lambda *s: torch.randn(*s, dtype=torch.bfloat16) * 1.6)(D, Hq * Dh) * (D ** -0.5)),
            "wo": _w((lambda *s: torch.randn(*s, dtype=torch.bfloat16) * 0.2)(Hq * Dh, D) * ((Hq * Dh) ** -0.5)),
        }
    _A_in = _A_setup()

    def _B_setup():
        B, S, D, F = 4, 1, 512, 1792
        return {
            "x": _w((lambda *s: torch.randn(*s, dtype=torch.bfloat16) * 0.05)(B, S, D)),
            "w1": _w((lambda *s: torch.randn(*s, dtype=torch.bfloat16) * 0.1)(D, F)),
            "b1": _w((lambda *s: torch.randn(*s, dtype=torch.bfloat16) * 0.1)(F)),
            "w2": _w((lambda *s: torch.randn(*s, dtype=torch.bfloat16) * 0.1)(F, D)),
            "b2": _w((lambda *s: torch.randn(*s, dtype=torch.bfloat16) * 0.1)(D)),
        }
    _B_in = _B_setup()

    return {
        "A_x": _A_in["x"],
        "A_k_cache": _A_in["k_cache"],
        "A_v_cache": _A_in["v_cache"],
        "A_wq": _A_in["wq"],
        "A_wo": _A_in["wo"],
        "B_x": _B_in["x"],
        "B_w1": _B_in["w1"],
        "B_b1": _B_in["b1"],
        "B_w2": _B_in["w2"],
        "B_b2": _B_in["b2"],
    }

def reference(A_x, A_k_cache, A_v_cache, A_wq, A_wo, B_x, B_w1, B_b1, B_w2, B_b2):
    def _A_ref(x, k_cache, v_cache, wq, wo):
        B, Sq, D = x.shape
        Hq, Dh = 32, 128
        Hkv = k_cache.shape[1]
        rep = Hq // Hkv
        q = (lambda x, *d: x.permute(*d))((x @ wq).reshape(B, Sq, Hq, Dh), 0, 2, 1, 3)
        k = (lambda x, n, axis: torch.repeat_interleave(x, n, dim=axis))(k_cache, rep, axis=1)
        v = (lambda x, n, axis: torch.repeat_interleave(x, n, dim=axis))(v_cache, rep, axis=1)
        scores = torch.einsum("bhqd,bhkd->bhqk", q, k) * (Dh ** -0.5)
        p = _softmax(scores, axis=-1)
        o = torch.einsum("bhqk,bhkd->bhqd", p, v)
        return (lambda x, *d: x.permute(*d))(o, 0, 2, 1, 3).reshape(B, Sq, Hq * Dh) @ wo

    def _B_ref(x, w1, b1, w2, b2):
        h = torch.einsum("bsd,df->bsf", x, w1) + b1
        zero = torch.zeros_like(h)
        r = torch.where(h > zero, h, zero)
        h = r * r
        out = torch.einsum("bsf,fd->bsd", h, w2) + b2
        return out

    x = A_x
    xn = _layernorm(x, axis=-1)
    s = _A_ref(xn, A_k_cache, A_v_cache, A_wq, A_wo)
    g = _silu(_B_ref(xn, B_w1, B_b1, B_w2, B_b2))
    return x + s * g
```

```python
import re

TRANS = ('v_exp_f32', 'v_log_f32', 'v_rcp_f32', 'v_rsq_f32', 'v_sqrt_f32', 'v_sin_f32', 'v_cos_f32', 'v_rcp_iflag_f32')

def regs_of(tok):
    tok = tok.strip()
    tok = tok.lstrip('-')
    m = re.fullmatch(r'abs\((.*)\)', tok)
    if m: tok = m.group(1)
    m = re.fullmatch(r'\|(.*)\|', tok)
    if m: tok = m.group(1)
    m = re.fullmatch(r'([vsa])(\d+)', tok)
    if m: return {(m.group(1), int(m.group(2)))}
    m = re.fullmatch(r'([vsa])\[(\d+):(\d+)\]', tok)
    if m: return {(m.group(1), i) for i in range(int(m.group(2)), int(m.group(3)) + 1)}
    if tok == 'vcc': return {('s', 106), ('s', 107)}
    if tok == 'vcc_lo': return {('s', 106)}
    if tok == 'vcc_hi': return {('s', 107)}
    if tok == 'exec': return {('s', 126), ('s', 127)}
    if tok == 'm0': return {('s', 124)}
    return set()

def split_ops(s):
    out = []; depth = 0; cur = ''
    for ch in s:
        if ch in '[(': depth += 1
        if ch in '])': depth -= 1
        if ch == ',' and depth == 0:
            out.append(cur.strip()); cur = ''
        else:
            cur += ch
    if cur.strip(): out.append(cur.strip())
    return out

class Ins:
    def __init__(self, text):
        self.text = text
        t = text.split(';')[0].strip()
        self.label = t.endswith(':')
        self.dir = t.startswith('.')
        self.op = ''
        self.kind = 'none'
        self.dst = set(); self.src = set(); self.srcC = set(); self.dppsrc = set(); self.lanesel = set()
        self.storedata = set()
        if not t or self.label or self.dir: return
        parts = t.split(None, 1)
        self.op = parts[0]
        rest = parts[1] if len(parts) > 1 else ''
        ops = split_ops(rest)
        mods = ''
        if ops:
            l = ops[-1].split(None, 1)
            ops[-1] = l[0]
            mods = l[1] if len(l) > 1 else ''
        self.ops = ops; self.mods = mods
        op = self.op
        R = [regs_of(o) for o in ops]
        if op.startswith('v_mfma'):
            self.kind = 'mfma'
            self.dst = R[0]; self.src = R[1] | R[2]; self.srcC = R[3]
            self.passes = 8 if '32x32' in op else 4
        elif op.startswith('v_'):
            self.kind = 'valu'
            base = op.replace('_e32', '').replace('_e64', '').replace('_dpp', '')
            self.base = base
            self.trans = base in TRANS
            if base.startswith('v_cmp'):
                self.dst = R[0]; self.src = set().union(*R[1:])
            elif base in ('v_add_co_u32', 'v_sub_co_u32', 'v_addc_co_u32'):
                self.dst = R[0] | R[1]; self.src = set().union(*R[2:])
            elif base.startswith('v_permlane'):
                self.dst = R[0] | R[1]; self.src = R[0] | R[1]
            elif base in ('v_readlane_b32',):
                self.dst = R[0]; self.src = R[1]; self.lanesel = R[2]
            elif base in ('v_writelane_b32',):
                self.dst = R[0]; self.src = R[1] | R[0]; self.lanesel = R[2]
            else:
                self.dst = R[0]; self.src = set().union(*R[1:]) if len(R) > 1 else set()
                if base in ('v_fmac_f32', 'v_dot2c_f32_bf16'): self.src |= R[0]
                if base == 'v_cndmask_b32' and len(ops) == 3: self.src |= regs_of('vcc')
            if '_dpp' in op:
                self.dppsrc = R[1]
                self.src |= R[0]
        elif op.startswith('buffer_') or op.startswith('global_'):
            self.kind = 'vmem'
            self.ldsdma = (' lds' in (' ' + mods)) or 'load_lds' in op
            if 'store' in op or 'atomic' in op:
                self.src = set().union(*R)
                if op.startswith('buffer_'): self.storedata = R[0]
                else: self.storedata = R[1]
                if 'atomic' in op and 'sc0' in mods: self.dst = R[0]
                self.wide = ('x4' in op or 'x3' in op)
            else:
                if self.ldsdma:
                    self.src = set().union(*R) | regs_of('m0')
                else:
                    self.dst = R[0]; self.src = set().union(*R[1:])
        elif op.startswith('ds_'):
            self.kind = 'ds'
            if 'read' in op or 'permute' in op or 'swizzle' in op:
                self.dst = R[0]; self.src = set().union(*R[1:])
            else:
                self.src = set().union(*R)
        elif op.startswith('s_'):
            self.kind = 'salu'
            if op in ('s_nop',):
                self.kind = 'nop'; self.n = int(ops[0], 0) + 1
            elif op.startswith('s_cmp') or op.startswith('s_cbranch') or op in ('s_branch', 's_waitcnt', 's_barrier', 's_sleep', 's_setprio', 's_endpgm', 's_bitcmp1_b32', 's_bitcmp0_b32'):
                self.src = set().union(*R) if R else set()
            else:
                self.dst = R[0] if R else set(); self.src = set().union(*R[1:]) if len(R) > 1 else set()
                if 'saveexec' in op: self.dst |= regs_of('exec')

def need(prod, cons):
    n = 0
    pk, ck = prod.kind, cons.kind
    pv = {r for r in prod.dst if r[0] in 'va'}
    ps = {r for r in prod.dst if r[0] == 's'}
    if pk == 'valu':
        if ck == 'valu':
            if pv & cons.dppsrc: n = max(n, 2)
            if cons.base.startswith('v_permlane') and (pv & cons.src): n = max(n, 2)
            if prod.trans and not cons.trans and (pv & cons.src): n = max(n, 1)
            if cons.base in ('v_readlane_b32', 'v_readfirstlane_b32') and (pv & cons.src): n = max(n, 1)
            if ps & cons.src: n = max(n, 2)
            if ps & cons.lanesel: n = max(n, 4)
            if (ps & regs_of('exec')):
                n = max(n, 5)
        if ck == 'mfma':
            if pv & (cons.src | cons.srcC): n = max(n, 2)
            if ps & regs_of('exec'): n = max(n, 4)
        if ck == 'vmem':
            if ps & cons.src: n = max(n, 5)
            if prod.trans and (pv & cons.src): n = max(n, 1)
        if ck == 'ds':
            if prod.trans and (pv & cons.src): n = max(n, 1)
    if pk == 'mfma':
        P = prod.passes
        big = {4: 8, 8: 12}[P]; ov = {4: 6, 8: 10}[P]; war = {4: 3, 8: 7}[P]
        if ck == 'mfma':
            if prod.dst & cons.src: n = max(n, big)
            if prod.dst & cons.srcC:
                if not (prod.dst == cons.srcC and cons.passes == P): n = max(n, ov)
            if (prod.dst & cons.dst) and not (prod.dst == cons.srcC): n = max(n, big)
        elif ck in ('valu', 'vmem', 'ds'):
            if prod.dst & (cons.src | cons.dst): n = max(n, big)
            if ck == 'valu' and (prod.srcC & cons.dst): n = max(n, war)
    if pk == 'salu':
        if ck == 'vmem' and getattr(cons, 'ldsdma', False) and (prod.dst & regs_of('m0')): n = max(n, 1)
    if pk == 'vmem' and prod.storedata and getattr(prod, 'wide', False):
        if ck == 'valu' and (prod.storedata & cons.dst): n = max(n, 2)
        elif cons.dst & prod.storedata: n = max(n, 1)
    return n

def fix_hazards(lines, window=14):
    out = []
    hist = []
    for text in lines:
        ins = Ins(text)
        if ins.kind == 'none':
            out.append(text); continue
        req = 0
        dist = 0
        for p in reversed(hist):
            r = need(p, ins)
            if r > dist: req = max(req, r - dist)
            dist += p.n if p.kind == 'nop' else 1
            if dist > window: break
        while req > 0:
            k = min(req, 16)
            nop = Ins(f"  s_nop {k-1}")
            out.append(nop.text); hist.append(nop)
            req -= k
        out.append(text); hist.append(ins)
        if ins.op in ('s_branch', 's_endpgm'):
            hist = []
        hist = hist[-40:]
    return out
```

```python
import sys, struct
from asmlib import fix_hazards
KNAME = "recurrent_scan__gqa_block_cached__dense_activation_squared_relu__decode_kernel"

def f32(x): return "0x%08x" % struct.unpack('<I', struct.pack('<f', x))[0]

QOFF, HOFF = 0x0, 0x8000
P1OFF, STOFF, P2OFF, P3OFF = 0x100000, 0x180000, 0x200000, 0x280000
WS_SIZE = 0x20000000
STAMP_OFF = 0x10000000
NINIT = 12
XN, QL, OL, PW = 0, 4096, 6144, 8192
PWH = 528; PWW = 4 * PWH
ML = PW + 4 * PWW
WOT, W2T, WQT, W1T = 20480, 36864, 45056, 61440
LDS_SIZE = 77824
SPIN = 30000

def gen(NX=4, WIN=8, KVF='nt', WF='nt', STAMPS=0, name='main', header=''):
    L = []
    A = lambda s: L.append("  " + s)
    LAB = lambda s: L.append(s + ":")
    uid = [0]
    def U(p):
        uid[0] += 1
        return f"L_{p}{uid[0]}"
    DPP = "row_mask:0xf bank_mask:0xf"
    def srd(d, p, size):
        A(f"s_mov_b32 s{d}, s{p}"); A(f"s_and_b32 s{d+1}, s{p+1}, 0xffff"); A(f"s_mov_b32 s{d+2}, {hex(size)}"); A(f"s_mov_b32 s{d+3}, 0x20000")
    def stamp(i, vt=60):
        if not STAMPS: return
        A("s_memrealtime s[90:91]")
        A("s_waitcnt lgkmcnt(0)")
        A(f"v_mov_b32 v{vt}, s90"); A(f"v_mov_b32 v{vt+1}, s91"); A(f"v_mov_b32 v{vt+2}, 0")
        A("s_mov_b64 s[92:93], exec"); A("s_mov_b64 exec, 1")
        A(f"buffer_store_dwordx2 v[{vt}:{vt+1}], v{vt+2}, s[40:43], s94 offen offset:{i*8}")
        A("s_mov_b64 exec, s[92:93]")
    def round_bf16(d, s, t):
        A(f"v_cvt_pk_bf16_f32 v{t}, v{s}, v{s}")
        A(f"v_lshlrev_b32 v{d}, 16, v{t}")
    def xrow(op, v, t):
        A(f"v_mov_b32 v{t}, v{v}")
        A(f"v_permlane16_swap_b32 v{v}, v{t}")
        A(f"{op} v{v}, v{v}, v{t}")
        A(f"v_mov_b32 v{t}, v{v}")
        A(f"v_permlane32_swap_b32 v{v}, v{t}")
        A(f"{op} v{v}, v{v}, v{t}")
    def wave_sum(v, t):
        for r in (8, 4, 2, 1):
            A(f"v_add_f32_dpp v{v}, v{v}, v{v} row_ror:{r} {DPP}")
        xrow("v_add_f32", v, t)
    def poll(loads, regs, tmp, sleep=1):
        lp, dn = U("pl"), U("pd")
        A(f"s_mov_b32 s60, {SPIN}")
        LAB(lp)
        for l in loads: A(l)
        A("s_waitcnt vmcnt(0)")
        rs = list(regs)
        first = True
        if len(rs) == 1:
            A(f"v_mov_b32 v{tmp}, v{rs[0]}")
        else:
            if len(rs) == 2:
                A(f"v_max_u32 v{tmp}, v{rs[0]}, v{rs[1]}"); rs = []
            else:
                A(f"v_max3_u32 v{tmp}, v{rs[0]}, v{rs[1]}, v{rs[2]}"); rs = rs[3:]
            while rs:
                if len(rs) >= 2:
                    A(f"v_max3_u32 v{tmp}, v{tmp}, v{rs[0]}, v{rs[1]}"); rs = rs[2:]
                else:
                    A(f"v_max_u32 v{tmp}, v{tmp}, v{rs[0]}"); rs = rs[1:]
        A(f"v_cmp_eq_u32 vcc, -1, v{tmp}")
        A(f"s_cbranch_vccz {dn}")
        if sleep: A(f"s_sleep {sleep}")
        A("s_sub_u32 s60, s60, 1")
        A("s_cmp_lg_u32 s60, 0")
        A(f"s_cbranch_scc1 {lp}")
        LAB(dn)
        A("s_nop 1")
    def wait_init():
        lp, dn = U("wl"), U("wd")
        A(f"v_min_u32 v56, {NINIT-1}, v1")
        A("v_lshlrev_b32 v56, 2, v56")
        A(f"s_mov_b32 s60, {SPIN}")
        LAB(lp)
        A("buffer_load_dword v57, v56, s[44:47], 0 offen sc1")
        A("s_waitcnt vmcnt(0)")
        A("v_cmp_eq_u32 vcc, 0, v57")
        A(f"s_cbranch_vccz {dn}")
        A("s_sleep 1")
        A("s_sub_u32 s60, s60, 1")
        A("s_cmp_lg_u32 s60, 0")
        A(f"s_cbranch_scc1 {lp}")
        LAB(dn)
    def wait_cnt():
        lp, dn = U("cl"), U("cd")
        A("v_mov_b32 v56, 0")
        A(f"s_mov_b32 s60, {SPIN}")
        A("s_movk_i32 s61, 256")
        LAB(lp)
        A("buffer_load_dword v57, v56, s[44:47], 0 offen offset:128 sc1")
        A("s_waitcnt vmcnt(0)")
        A("v_cmp_gt_u32 vcc, s61, v57")
        A(f"s_cbranch_vccz {dn}")
        A("s_sleep 8")
        A("s_sub_u32 s60, s60, 1")
        A("s_cmp_lg_u32 s60, 0")
        A(f"s_cbranch_scc1 {lp}")
        LAB(dn)

    L.append(header.rstrip("\n")) if header else None
    L.append(f"; @launch grid=(256,1,1) block=(512,1,1) lds={LDS_SIZE}")
    L.append('.amdgcn_target "amdgcn-amd-amdhsa--gfx950"')
    L.append(".text"); L.append(f".globl {KNAME}"); L.append(".p2align 8"); L.append(f".type {KNAME},@function")
    LAB(KNAME)
    A("s_cmp_ge_u32 s2, 256")
    A("s_cbranch_scc1 L_end")
    A("s_load_dwordx16 s[4:19], s[0:1], 0")
    A("s_load_dwordx8 s[20:27], s[0:1], 64")
    A("s_load_dwordx2 s[28:29], s[0:1], 96")
    if STAMPS: A("s_memrealtime s[88:89]")
    A("v_and_b32 v1, 63, v0")
    A("v_lshrrev_b32 v2, 6, v0")
    A("v_readfirstlane_b32 s3, v2")
    A("s_and_b32 s30, s2, 7")
    A("s_lshr_b32 s31, s2, 3")
    A("s_lshr_b32 s62, s31, 3")
    A("s_and_b32 s63, s31, 7")
    A("s_lshl_b32 s94, s2, 6")
    A(f"s_add_u32 s94, s94, {hex(STAMP_OFF)}")
    A("s_cmp_ge_u32 s3, 4")
    A("s_cbranch_scc1 L_stream")
    A("s_setprio 3")
    A("v_lshlrev_b32 v3, 4, v1")
    A("s_lshl_b32 s64, s3, 10")
    A("s_waitcnt lgkmcnt(0)")
    srd(56, 4, 4096)
    A("buffer_load_dwordx4 v[8:11], v3, s[56:59], s64 offen")
    srd(40, 28, WS_SIZE)
    srd(44, 26, 256)
    A("s_lshl_b32 s65, s62, 3"); A("s_add_u32 s65, s65, s30")
    A("s_mov_b32 s66, s63")
    A("v_bfe_u32 v4, v1, 3, 2"); A("v_lshlrev_b32 v4, 3, v4")
    A("v_lshrrev_b32 v5, 5, v1"); A("v_lshlrev_b32 v5, 2, v5")
    A("v_bfe_u32 v6, v1, 1, 2")
    A("v_add3_u32 v4, v4, v5, v6")
    A("v_and_b32 v5, 1, v1"); A("v_lshlrev_b32 v5, 4, v5")
    A("s_mov_b32 s67, 0")
    A("s_cmp_eq_u32 s3, 1"); A("s_cbranch_scc1 L_h1a")
    A("s_cmp_eq_u32 s3, 2"); A("s_cbranch_scc1 L_h2a")
    A("s_cmp_eq_u32 s3, 3"); A("s_cbranch_scc1 L_h3a")
    srd(48, 10, 512 * 8192)
    A("v_lshlrev_b32 v6, 13, v4"); A("v_add_u32 v6, v6, v5")
    A("s_lshl_b32 s68, s30, 5"); A("s_add_u32 s68, s68, s31")
    A("s_lshl_b32 s69, s68, 5")
    A(f"s_mov_b32 m0, {WQT}")
    for t in range(16):
        A(f"buffer_load_dwordx4 v6, s[48:51], s69 offen {WF} lds")
        if t < 15:
            A(f"s_add_u32 s69, s69, {32*8192}")
            A("s_add_u32 m0, m0, 1024")
    A("s_waitcnt vmcnt(16)")
    A("s_branch L_ln")
    LAB("L_h1a")
    A("s_lshr_b32 s68, s31, 2"); A("s_lshl_b32 s68, s68, 3"); A("s_add_u32 s68, s68, s30")
    A("s_cmp_ge_u32 s68, 28"); A("s_cbranch_scc1 L_h1n")
    A("s_mov_b32 s67, 1")
    A("s_lshl_b32 s68, s68, 2"); A("s_and_b32 s69, s31, 3"); A("s_add_u32 s68, s68, s69")
    srd(48, 16, 512 * 3584)
    srd(52, 18, 3584)
    A("s_movk_i32 s69, 3584")
    A("v_mul_lo_u32 v6, v4, s69"); A("v_add_u32 v6, v6, v5")
    A("s_lshl_b32 s69, s68, 5")
    A("v_lshrrev_b32 v7, 4, v1"); A("v_lshlrev_b32 v7, 3, v7")
    A("buffer_load_dwordx2 v[58:59], v7, s[52:55], s69 offen")
    A(f"s_mov_b32 m0, {W1T}")
    for t in range(16):
        A(f"buffer_load_dwordx4 v6, s[48:51], s69 offen {WF} lds")
        if t < 15:
            A(f"s_add_u32 s69, s69, {32*3584}")
            A("s_add_u32 m0, m0, 1024")
    A("s_waitcnt vmcnt(17)")
    A("s_branch L_ln")
    LAB("L_h1n")
    A("s_waitcnt vmcnt(0)")
    A("s_branch L_ln")
    LAB("L_h2a")
    srd(48, 12, 4096 * 1024)
    srd(52, 20, 1792 * 1024)
    A("v_lshrrev_b32 v6, 3, v1"); A("v_lshlrev_b32 v6, 10, v6")
    A("v_and_b32 v7, 7, v1"); A("v_lshlrev_b32 v7, 4, v7"); A("v_add_u32 v6, v6, v7")
    A("s_lshl_b32 s69, s65, 17"); A("s_lshl_b32 s68, s66, 7"); A("s_add_u32 s69, s69, s68")
    A(f"s_mov_b32 m0, {WOT}")
    for t in range(16):
        A(f"buffer_load_dwordx4 v6, s[48:51], s69 offen nt lds")
        if t < 15:
            A(f"s_add_u32 s69, s69, 8192")
            A("s_add_u32 m0, m0, 1024")
    A("s_cmp_lt_u32 s31, 28"); A("s_cbranch_scc1 L_h2w")
    A("s_waitcnt vmcnt(16)")
    A("s_branch L_ln")
    LAB("L_h2w")
    A("s_lshl_b32 s69, s31, 16"); A("s_lshl_b32 s68, s30, 7"); A("s_add_u32 s69, s69, s68")
    A(f"s_mov_b32 m0, {W2T}")
    for t in range(8):
        A(f"buffer_load_dwordx4 v6, s[52:55], s69 offen nt lds")
        if t < 7:
            A(f"s_add_u32 s69, s69, 8192")
            A("s_add_u32 m0, m0, 1024")
    A("s_waitcnt vmcnt(24)")
    A("s_branch L_ln")
    LAB("L_h3a")
    A("v_mov_b32 v12, -1"); A("v_mov_b32 v13, -1"); A("v_mov_b32 v14, -1"); A("v_mov_b32 v15, -1")
    A(f"s_cmp_ge_u32 s2, {NINIT}"); A("s_cbranch_scc1 L_h3n")
    A("s_lshl_b32 s69, s2, 12")
    for i in range(4):
        A(f"buffer_store_dwordx4 v[12:15], v3, s[40:43], s69 offen offset:{i*1024} sc1")
    A("s_waitcnt vmcnt(0)")
    A("v_mov_b32 v16, 1"); A("v_mov_b32 v17, 0")
    A("s_lshl_b32 s69, s2, 2")
    A("s_mov_b64 exec, 1")
    A("buffer_store_dword v16, v17, s[44:47], s69 offen sc1")
    A("s_mov_b64 exec, -1")
    A("s_branch L_ln")
    LAB("L_h3n")
    A("s_waitcnt vmcnt(0)")
    LAB("L_ln")
    for i in range(4):
        A(f"v_lshlrev_b32 v{12+2*i}, 16, v{8+i}")
        A(f"v_and_b32 v{13+2*i}, 0xffff0000, v{8+i}")
    A("v_add_f32 v20, v12, v13"); A("v_add_f32 v21, v14, v15"); A("v_add_f32 v22, v16, v17"); A("v_add_f32 v23, v18, v19")
    A("v_add_f32 v20, v20, v21"); A("v_add_f32 v22, v22, v23"); A("v_add_f32 v20, v20, v22")
    wave_sum(20, 21)
    A(f"v_mul_f32 v20, {f32(1.0/512)}, v20")
    for i in range(8):
        A(f"v_sub_f32 v{24+i}, v{12+i}, v20")
    A("v_mul_f32 v22, v24, v24")
    for i in range(1, 8):
        A(f"v_fmac_f32 v22, v{24+i}, v{24+i}")
    wave_sum(22, 21)
    A(f"v_mul_f32 v22, {f32(1.0/512)}, v22")
    round_bf16(20, 20, 21)
    round_bf16(22, 22, 21)
    A(f"v_add_f32 v22, {f32(1e-5)}, v22")
    round_bf16(22, 22, 21)
    A("v_sqrt_f32 v22, v22")
    round_bf16(22, 22, 21)
    A("v_rcp_f32 v23, v22")
    for i in range(4):
        a, b_ = 12 + 2*i, 13 + 2*i
        A(f"v_sub_f32 v{a}, v{a}, v20"); A(f"v_sub_f32 v{b_}, v{b_}, v20")
        A(f"v_cvt_pk_bf16_f32 v21, v{a}, v{b_}")
        A(f"v_lshlrev_b32 v{a}, 16, v21"); A(f"v_and_b32 v{b_}, 0xffff0000, v21")
        A(f"v_mul_f32 v24, v{a}, v23"); A(f"v_mul_f32 v25, v{b_}, v23")
        A(f"v_fma_f32 v26, -v24, v22, v{a}"); A(f"v_fma_f32 v27, -v25, v22, v{b_}")
        A(f"v_fmac_f32 v24, v26, v23"); A(f"v_fmac_f32 v25, v27, v23")
        A(f"v_cvt_pk_bf16_f32 v{28+i}, v24, v25")
    A("v_add_u32 v21, s64, v3")
    A(f"ds_write_b128 v21, v[28:31] offset:{XN}")
    A("s_waitcnt lgkmcnt(0)")
    A("s_barrier")
    if STAMPS:
        A("s_cmp_lg_u32 s3, 0"); A("s_cbranch_scc1 L_ns1")
        A("v_mov_b32 v60, s88"); A("v_mov_b32 v61, s89"); A("v_mov_b32 v62, 0")
        A("s_mov_b64 exec, 1")
        A("buffer_store_dwordx2 v[60:61], v62, s[40:43], s94 offen")
        A("s_mov_b64 exec, -1")
        stamp(1)
        LAB("L_ns1")
    A("s_cmp_eq_u32 s3, 2"); A("s_cbranch_scc1 L_h2b")
    A("s_cmp_eq_u32 s3, 3"); A("s_cbranch_scc1 L_h3b")
    A("s_cmp_eq_u32 s3, 0"); A("s_cbranch_scc1 L_stageA")
    A("s_cmp_eq_u32 s67, 0"); A("s_cbranch_scc1 L_b1")
    LAB("L_stageA")
    A("v_and_b32 v6, 3, v1"); A("v_lshlrev_b32 v6, 10, v6")
    A("v_lshrrev_b32 v7, 4, v1"); A("v_lshlrev_b32 v7, 4, v7"); A("v_add_u32 v6, v6, v7")
    for t in range(8):
        A(f"ds_read_b128 v[{64+4*t}:{67+4*t}], v6 offset:{XN + t*64}")
    A("s_waitcnt lgkmcnt(0)")
    for t in range(8, 16):
        A(f"ds_read_b128 v[{64+4*t}:{67+4*t}], v6 offset:{XN + t*64}")
    A("v_lshlrev_b32 v7, 3, v1")
    A(f"s_mul_i32 s69, s3, {W1T - WQT}")
    A(f"s_add_u32 s69, s69, {WQT}")
    A("v_add_u32 v7, s69, v7")
    A("s_waitcnt vmcnt(0) lgkmcnt(0)")
    for q4 in range(4):
        for t in range(4*q4, 4*q4+4):
            A(f"ds_read_b64_tr_b16 v[{128+4*t}:{129+4*t}], v7 offset:{t*1024}")
            A(f"ds_read_b64_tr_b16 v[{130+4*t}:{131+4*t}], v7 offset:{t*1024+512}")
        if q4 > 0:
            A("s_waitcnt lgkmcnt(8)")
            for t in range(4*q4-4, 4*q4):
                c = "0" if t == 0 else "v[32:35]"
                A(f"v_mfma_f32_16x16x32_bf16 v[32:35], v[{128+4*t}:{131+4*t}], v[{64+4*t}:{67+4*t}], {c}")
    A("s_waitcnt lgkmcnt(0)")
    for t in range(12, 16):
        A(f"v_mfma_f32_16x16x32_bf16 v[32:35], v[{128+4*t}:{131+4*t}], v[{64+4*t}:{67+4*t}], v[32:35]")
    A("v_and_b32 v6, 15, v1")
    A("v_lshrrev_b32 v7, 4, v1"); A("v_lshlrev_b32 v7, 3, v7")
    A("s_lshl_b32 s69, s68, 5")
    A("s_cmp_eq_u32 s3, 0"); A("s_cbranch_scc1 L_qfin")
    A("v_cvt_pk_bf16_f32 v36, v32, v33"); A("v_cvt_pk_bf16_f32 v37, v34, v35")
    A("v_lshlrev_b32 v32, 16, v36"); A("v_and_b32 v33, 0xffff0000, v36")
    A("v_lshlrev_b32 v34, 16, v37"); A("v_and_b32 v35, 0xffff0000, v37")
    A("v_lshlrev_b32 v40, 16, v58"); A("v_and_b32 v41, 0xffff0000, v58")
    A("v_lshlrev_b32 v42, 16, v59"); A("v_and_b32 v43, 0xffff0000, v59")
    for i in range(4): A(f"v_add_f32 v{32+i}, v{32+i}, v{40+i}")
    A("v_cvt_pk_bf16_f32 v36, v32, v33"); A("v_cvt_pk_bf16_f32 v37, v34, v35")
    A("v_lshlrev_b32 v32, 16, v36"); A("v_and_b32 v33, 0xffff0000, v36")
    A("v_lshlrev_b32 v34, 16, v37"); A("v_and_b32 v35, 0xffff0000, v37")
    for i in range(4): A(f"v_max_f32 v{32+i}, 0, v{32+i}")
    for i in range(4): A(f"v_mul_f32 v{32+i}, v{32+i}, v{32+i}")
    A("v_lshlrev_b32 v6, 12, v6")
    A(f"s_add_u32 s69, s69, {HOFF}")
    A("s_branch L_apub")
    LAB("L_qfin")
    A("s_nop 7")
    A("v_lshlrev_b32 v6, 13, v6")
    LAB("L_apub")
    A("v_cvt_pk_bf16_f32 v36, v32, v33"); A("v_cvt_pk_bf16_f32 v37, v34, v35")
    A("v_add_u32 v6, v6, v7")
    A("v_min_u32 v36, 0xfffffffe, v36"); A("v_min_u32 v37, 0xfffffffe, v37")
    wait_init()
    A("s_mov_b64 exec, 0x000f000f000f000f" if False else "s_mov_b32 exec_lo, 0x000f000f")
    A("s_mov_b32 exec_hi, 0x000f000f")
    A("buffer_store_dwordx2 v[36:37], v6, s[40:43], s69 offen sc1")
    A("s_mov_b64 exec, -1")
    A("s_cmp_lg_u32 s3, 0"); A("s_cbranch_scc1 L_b1")
    stamp(2)
    A("s_lshl_b32 s69, s62, 13"); A("s_lshl_b32 s70, s63, 10"); A("s_add_u32 s69, s69, s70")
    poll(["buffer_load_dwordx4 v[36:39], v3, s[40:43], s69 offen sc1"], [36, 37, 38, 39], 40)
    A(f"ds_write_b128 v3, v[36:39] offset:{QL}")
    A("s_waitcnt lgkmcnt(0)")
    A("s_branch L_b1")
    LAB("L_h2b")
    A("s_waitcnt vmcnt(0)")
    A("s_branch L_b1")
    LAB("L_h3b")
    A("v_mov_b32 v12, -1"); A("v_mov_b32 v13, -1"); A("v_mov_b32 v14, -1"); A("v_mov_b32 v15, -1")
    A("s_lshl_b32 s69, s63, 7"); A("s_lshl_b32 s70, s62, 3"); A("s_add_u32 s69, s69, s70"); A("s_add_u32 s69, s69, s30")
    A("v_lshrrev_b32 v6, 5, v1"); A("v_lshlrev_b32 v6, 14, v6")
    A("v_and_b32 v7, 31, v1"); A("v_lshlrev_b32 v7, 4, v7"); A("v_add_u32 v6, v6, v7")
    A("s_lshl_b32 s70, s69, 9"); A(f"s_add_u32 s70, s70, {P1OFF}")
    A("buffer_store_dwordx4 v[12:15], v6, s[40:43], s70 offen sc1")
    A("s_add_u32 s70, s70, 0x8000")
    A("buffer_store_dwordx4 v[12:15], v6, s[40:43], s70 offen sc1")
    A("v_lshlrev_b32 v6, 8, v1")
    A("s_lshl_b32 s70, s69, 3"); A(f"s_add_u32 s70, s70, {STOFF}")
    A("s_mov_b64 exec, 15")
    A("buffer_store_dwordx2 v[12:13], v6, s[40:43], s70 offen sc1")
    A("s_mov_b64 exec, -1")
    A("v_lshrrev_b32 v6, 4, v1"); A("v_lshlrev_b32 v6, 16, v6")
    A("v_and_b32 v7, 15, v1"); A("v_lshlrev_b32 v7, 4, v7"); A("v_add_u32 v6, v6, v7")
    A("s_lshl_b32 s70, s66, 5"); A("s_add_u32 s70, s70, s65"); A("s_lshl_b32 s70, s70, 8"); A(f"s_add_u32 s70, s70, {P2OFF}")
    A("buffer_store_dwordx4 v[12:15], v6, s[40:43], s70 offen sc1")
    A("s_lshl_b32 s70, s30, 5"); A("s_add_u32 s70, s70, s31"); A("s_lshl_b32 s70, s70, 8"); A(f"s_add_u32 s70, s70, {P3OFF}")
    A("buffer_store_dwordx4 v[12:15], v6, s[40:43], s70 offen sc1")
    A("s_waitcnt vmcnt(0)")
    LAB("L_b1")
    A("s_barrier")
    if STAMPS:
        A("s_cmp_lg_u32 s3, 0"); A("s_cbranch_scc1 L_ns3")
        stamp(3)
        LAB("L_ns3")
    A("v_lshrrev_b32 v6, 4, v1"); A("v_lshlrev_b32 v6, 10, v6")
    A("v_bfe_u32 v7, v1, 2, 2"); A("v_lshlrev_b32 v7, 7, v7"); A("v_add_u32 v6, v6, v7")
    A("v_and_b32 v7, 3, v1"); A("v_lshlrev_b32 v7, 3, v7"); A("v_add_u32 v50, v6, v7")
    A("s_cmp_eq_u32 s3, 3"); A("s_cbranch_scc1 L_h3c")
    A("s_cmp_eq_u32 s3, 1"); A("s_cbranch_scc0 L_wof")
    A("s_cmp_ge_u32 s31, 28"); A("s_cbranch_scc1 L_wof")
    for nt in range(4):
        for t in range(2):
            r = 128 + (nt*2 + t) * 4
            A(f"ds_read_b64_tr_b16 v[{r}:{r+1}], v50 offset:{W2T + t*4096 + nt*32}")
            A(f"ds_read_b64_tr_b16 v[{r+2}:{r+3}], v50 offset:{W2T + t*4096 + nt*32 + 512}")
        if nt == 1: A("s_waitcnt lgkmcnt(0)")
    A("v_and_b32 v6, 3, v1"); A("v_lshlrev_b32 v6, 12, v6")
    A("v_lshrrev_b32 v7, 4, v1"); A("v_lshlrev_b32 v7, 4, v7"); A("v_add_u32 v6, v6, v7")
    A("s_lshl_b32 s69, s31, 7"); A(f"s_add_u32 s69, s69, {HOFF}")
    poll(["buffer_load_dwordx4 v[64:67], v6, s[40:43], s69 offen sc1",
          "buffer_load_dwordx4 v[68:71], v6, s[40:43], s69 offen offset:64 sc1"], list(range(64, 72)), 40, sleep=4)
    A("s_waitcnt lgkmcnt(0)")
    for t in range(2):
        for nt in range(4):
            r = 128 + (nt*2 + t) * 4
            c = "0" if t == 0 else f"v[{72+4*nt}:{75+4*nt}]"
            A(f"v_mfma_f32_16x16x32_bf16 v[{72+4*nt}:{75+4*nt}], v[{r}:{r+3}], v[{64+4*t}:{67+4*t}], {c}")
    A("v_and_b32 v6, 15, v1"); A("v_lshlrev_b32 v6, 16, v6"); A("v_add_u32 v6, v6, v7")
    A("s_lshl_b32 s70, s30, 5"); A("s_add_u32 s70, s70, s31"); A("s_lshl_b32 s70, s70, 8"); A(f"s_add_u32 s70, s70, {P3OFF}")
    A("s_mov_b32 exec_lo, 0x000f000f"); A("s_mov_b32 exec_hi, 0x000f000f")
    for nt in range(4):
        A(f"buffer_store_dwordx4 v[{72+4*nt}:{75+4*nt}], v6, s[40:43], s70 offen offset:{nt*64} sc1")
    A("s_mov_b64 exec, -1")
    A("s_branch L_wof")
    LAB("L_h3c")
    A("v_mov_b32 v16, 1"); A("v_mov_b32 v17, 0")
    A("s_mov_b64 exec, 1")
    A("buffer_atomic_add v16, v17, s[44:47], 0 offen offset:128 sc1")
    A("s_mov_b64 exec, -1")
    A("s_cmp_lt_u32 s31, 28"); A("s_cbranch_scc1 L_wof")
    wait_cnt()
    A("s_sub_u32 s71, s31, 28")
    A("s_lshl_b32 s72, s71, 3"); A("s_add_u32 s72, s72, s30"); A("s_lshl_b32 s72, s72, 13")
    A(f"s_add_u32 s73, s72, {P3OFF}")
    A("s_add_u32 s74, s73, 4096")
    srd(52, 22, 1024)
    A("v_and_b32 v7, 15, v1"); A("v_lshlrev_b32 v7, 3, v7")
    A("s_lshl_b32 s69, s30, 7")
    A("buffer_load_dwordx2 v[44:45], v7, s[52:55], s69 offen")
    A("s_lshl_b32 s70, s71, 10"); A("s_add_u32 s75, s70, s69")
    A("buffer_load_dwordx2 v[46:47], v7, s[56:59], s75 offen")
    lds_ = [f"buffer_load_dwordx4 v[{64+4*i}:{67+4*i}], v3, s[40:43], {'s73' if i < 4 else 's74'} offen offset:{(i%4)*1024} sc1" for i in range(7)]
    poll(lds_, list(range(64, 92)), 40, sleep=8)
    for i in range(1, 7):
        for c in range(4): A(f"v_add_f32 v{64+c}, v{64+c}, v{64+4*i+c}")
    for c in range(4): xrow("v_add_f32", 64 + c, 40)
    A("v_cvt_pk_bf16_f32 v36, v64, v65"); A("v_cvt_pk_bf16_f32 v37, v66, v67")
    A("v_lshlrev_b32 v64, 16, v36"); A("v_and_b32 v65, 0xffff0000, v36")
    A("v_lshlrev_b32 v66, 16, v37"); A("v_and_b32 v67, 0xffff0000, v37")
    A("v_lshlrev_b32 v40, 16, v44"); A("v_and_b32 v41, 0xffff0000, v44")
    A("v_lshlrev_b32 v42, 16, v45"); A("v_and_b32 v43, 0xffff0000, v45")
    for c in range(4): A(f"v_add_f32 v{64+c}, v{64+c}, v{40+c}")
    A("v_cvt_pk_bf16_f32 v36, v64, v65"); A("v_cvt_pk_bf16_f32 v37, v66, v67")
    A("v_lshlrev_b32 v64, 16, v36"); A("v_and_b32 v65, 0xffff0000, v36")
    A("v_lshlrev_b32 v66, 16, v37"); A("v_and_b32 v67, 0xffff0000, v37")
    for c in range(4): A(f"v_mul_f32 v{40+c}, {f32(-1.4426950408889634)}, v{64+c}")
    for c in range(4): A(f"v_exp_f32 v{40+c}, v{40+c}")
    for c in range(4): A(f"v_add_f32 v{40+c}, 1.0, v{40+c}")
    for c in range(4): A(f"v_rcp_f32 v{40+c}, v{40+c}")
    for c in range(4): A(f"v_mul_f32 v{64+c}, v{64+c}, v{40+c}")
    A("v_cvt_pk_bf16_f32 v36, v64, v65"); A("v_cvt_pk_bf16_f32 v37, v66, v67")
    A("v_lshlrev_b32 v52, 16, v36"); A("v_and_b32 v53, 0xffff0000, v36")
    A("v_lshlrev_b32 v54, 16, v37"); A("v_and_b32 v55, 0xffff0000, v37")
    LAB("L_wof")
    n = 0
    for nt in range(4):
        for t in range(4):
            r = 128 + (nt*4 + t) * 4
            A(f"ds_read_b64_tr_b16 v[{r}:{r+1}], v50 offset:{WOT + t*4096 + nt*32}")
            A(f"ds_read_b64_tr_b16 v[{r+2}:{r+3}], v50 offset:{WOT + t*4096 + nt*32 + 512}")
        A("s_waitcnt lgkmcnt(0)")
    wait_cnt()
    A("v_and_b32 v51, 15, v1"); A("v_lshlrev_b32 v51, 3, v51")
    A("s_lshl_b32 s69, s65, 5"); A("s_lshl_b32 s70, s3, 3"); A("s_add_u32 s69, s69, s70")
    A("s_lshl_b32 s76, s69, 9"); A(f"s_add_u32 s76, s76, {P1OFF}")
    A("s_lshl_b32 s77, s69, 3"); A(f"s_add_u32 s77, s77, {STOFF}")
    A("v_lshlrev_b32 v4, 3, v1")
    A("v_and_b32 v5, 7, v1"); A("v_lshlrev_b32 v5, 3, v5")
    A("s_lshl_b32 s70, s3, 8")
    A("v_lshlrev_b32 v6, 2, v1"); A("v_add_u32 v6, s70, v6")
    A("v_lshrrev_b32 v7, 4, v1"); A("v_lshlrev_b32 v7, 4, v7")
    A("v_add_u32 v8, s70, v7")
    A("s_lshl_b32 s78, s3, 3"); A("s_add_u32 s78, s78, s66"); A("s_lshl_b32 s78, s78, 5"); A("s_add_u32 s78, s78, s65")
    A("s_lshl_b32 s78, s78, 8"); A(f"s_add_u32 s78, s78, {P2OFF}")
    A("s_barrier")
    if STAMPS:
        A("s_cmp_lg_u32 s3, 0"); A("s_cbranch_scc1 L_ns4")
        stamp(4)
        LAB("L_ns4")
    lds_ = ["buffer_load_dwordx2 v[80:81], v5, s[40:43], s77 offen sc1"]
    lds_ += [f"buffer_load_dwordx2 v[{64+2*s}:{65+2*s}], v4, s[40:43], s76 offen offset:{s*512} sc1" for s in range(8)]
    poll(lds_, list(range(64, 82)), 40, sleep=1)
    if STAMPS:
        A("s_cmp_lg_u32 s3, 0"); A("s_cbranch_scc1 L_ns5")
        stamp(5)
        LAB("L_ns5")
    A("v_mov_b32 v82, v80")
    A(f"v_max_f32_dpp v82, v82, v82 quad_perm:[1,0,3,2] {DPP}")
    A(f"v_max_f32_dpp v82, v82, v82 quad_perm:[2,3,0,1] {DPP}")
    A(f"v_max_f32_dpp v82, v82, v82 row_half_mirror {DPP}")
    A("v_sub_f32 v83, v80, v82")
    A("v_exp_f32 v83, v83")
    A("v_mul_f32 v84, v83, v81")
    A(f"v_add_f32_dpp v84, v84, v84 quad_perm:[1,0,3,2] {DPP}")
    A(f"v_add_f32_dpp v84, v84, v84 quad_perm:[2,3,0,1] {DPP}")
    A(f"v_add_f32_dpp v84, v84, v84 row_half_mirror {DPP}")
    A("v_rcp_f32 v84, v84")
    A("v_mul_f32 v83, v83, v84")
    for s in range(8): A(f"v_readlane_b32 s{80+s}, v83, {s}")
    A("v_mul_f32 v86, s80, v64"); A("v_mul_f32 v87, s80, v65")
    for s in range(1, 8):
        A(f"v_fmac_f32 v86, s{80+s}, v{64+2*s}"); A(f"v_fmac_f32 v87, s{80+s}, v{65+2*s}")
    A("v_cvt_pk_bf16_f32 v86, v86, v87")
    A(f"ds_write_b32 v6, v86 offset:{OL}")
    A("s_waitcnt lgkmcnt(0)")
    for t in range(4):
        A(f"ds_read_b128 v[{96+4*t}:{99+4*t}], v8 offset:{OL + t*64}")
    A("s_waitcnt lgkmcnt(0)")
    for t in range(4):
        for nt in range(4):
            r = 128 + (nt*4 + t) * 4
            c = "0" if t == 0 else f"v[{112+4*nt}:{115+4*nt}]"
            A(f"v_mfma_f32_16x16x32_bf16 v[{112+4*nt}:{115+4*nt}], v[{r}:{r+3}], v[{96+4*t}:{99+4*t}], {c}")
    A("s_mov_b32 exec_lo, 0x00010001"); A("s_mov_b32 exec_hi, 0x00010001")
    for nt in range(4):
        A(f"buffer_store_dwordx4 v[{112+4*nt}:{115+4*nt}], v7, s[40:43], s78 offen offset:{nt*64} sc1")
    A("s_mov_b64 exec, -1")
    if STAMPS:
        A("s_cmp_lg_u32 s3, 0"); A("s_cbranch_scc1 L_ns6")
        stamp(6)
        A("s_cmp_ge_u32 s31, 28"); A("s_cbranch_scc1 L_ns6")
        stamp(7)
        LAB("L_ns6")
    A("s_cmp_lg_u32 s3, 3"); A("s_cbranch_scc1 L_end")
    A("s_cmp_lt_u32 s31, 28"); A("s_cbranch_scc1 L_end")
    A(f"s_add_u32 s73, s72, {P2OFF}")
    A("s_add_u32 s74, s73, 4096")
    srd(52, 24, 4096)
    lds_ = [f"buffer_load_dwordx4 v[{64+4*i}:{67+4*i}], v3, s[40:43], {'s73' if i < 4 else 's74'} offen offset:{(i%4)*1024} sc1" for i in range(8)]
    poll(lds_, list(range(64, 96)), 40, sleep=1)
    for i in range(1, 8):
        for c in range(4): A(f"v_add_f32 v{64+c}, v{64+c}, v{64+4*i+c}")
    for c in range(4): xrow("v_add_f32", 64 + c, 40 + c)
    A("v_cvt_pk_bf16_f32 v36, v64, v65"); A("v_cvt_pk_bf16_f32 v37, v66, v67")
    A("v_lshlrev_b32 v64, 16, v36"); A("v_and_b32 v65, 0xffff0000, v36")
    A("v_lshlrev_b32 v66, 16, v37"); A("v_and_b32 v67, 0xffff0000, v37")
    for c in range(4): A(f"v_mul_f32 v{64+c}, v{64+c}, v{52+c}")
    A("v_cvt_pk_bf16_f32 v36, v64, v65"); A("v_cvt_pk_bf16_f32 v37, v66, v67")
    A("v_lshlrev_b32 v64, 16, v36"); A("v_and_b32 v65, 0xffff0000, v36")
    A("v_lshlrev_b32 v66, 16, v37"); A("v_and_b32 v67, 0xffff0000, v37")
    A("v_lshlrev_b32 v40, 16, v46"); A("v_and_b32 v41, 0xffff0000, v46")
    A("v_lshlrev_b32 v42, 16, v47"); A("v_and_b32 v43, 0xffff0000, v47")
    for c in range(4): A(f"v_add_f32 v{64+c}, v{64+c}, v{40+c}")
    A("v_cvt_pk_bf16_f32 v36, v64, v65"); A("v_cvt_pk_bf16_f32 v37, v66, v67")
    A("s_mov_b64 exec, 0xffff")
    A("buffer_store_dwordx2 v[36:37], v51, s[52:55], s75 offen")
    A("s_mov_b64 exec, -1")
    if STAMPS:
        A("s_waitcnt vmcnt(0)")
        stamp(7)
    A("s_branch L_end")

    LAB("L_stream")
    NSLOT = 2 + NX
    assert 64 + 32 * NSLOT <= 256
    NT = 32
    A("v_lshrrev_b32 v4, 4, v1"); A("v_lshlrev_b32 v4, 6, v4")
    A("v_bfe_u32 v5, v1, 2, 2"); A("v_lshlrev_b32 v5, 8, v5")
    A("v_and_b32 v6, 3, v1"); A("v_lshlrev_b32 v7, 4, v6")
    A("v_add3_u32 v2, v4, v5, v7")
    A("v_lshlrev_b32 v3, 4, v1")
    A("s_sub_u32 s64, s3, 4")
    A("s_lshl_b32 s65, s31, 22"); A("s_lshl_b32 s66, s30, 19"); A("s_add_u32 s65, s65, s66")
    A("s_lshl_b32 s66, s64, 12"); A("s_add_u32 s65, s65, s66")
    A("s_mov_b32 s66, s65")
    A("s_waitcnt lgkmcnt(0)")
    srd(32, 6, 0x8000000)
    srd(36, 8, 0x8000000)
    def kreg(slot, j): return 64 + 32*slot + 4*j
    def vreg(slot, j): return 64 + 32*slot + 16 + 4*j
    def issueK(slot):
        for j in range(4):
            r = kreg(slot, j)
            A(f"buffer_load_dwordx4 v[{r}:{r+3}], v2, s[32:35], s65 offen offset:{j*1024} {KVF}")
        A("s_add_u32 s65, s65, 16384")
    def issueV(slot):
        for j in range(4):
            r = vreg(slot, j)
            A(f"buffer_load_dwordx4 v[{r}:{r+3}], v3, s[36:39], s66 offen offset:{j*1024} {KVF}")
        A("s_add_u32 s66, s66, 16384")
    groups = []
    for s in range(NSLOT):
        groups.append(('K', s)); groups.append(('V', s))
    issued = 0
    b0done = False
    for gi, (kind, s) in enumerate(groups):
        if issued >= WIN:
            if not b0done:
                A("s_barrier")
                b0done = True
            A(f"s_waitcnt vmcnt({WIN-4})")
        (issueK if kind == 'K' else issueV)(s)
        issued += 4
    if not b0done: A("s_barrier")
    srd(40, 28, WS_SIZE)
    A("v_and_b32 v8, 1, v1"); A("v_lshlrev_b32 v8, 4, v8")
    A("v_mov_b32 v9, 0xffff"); A("v_lshlrev_b32 v8, v8, v9")
    A("v_cmp_gt_u32 vcc, 2, v6")
    A("v_cndmask_b32 v4, 0, v8, vcc")
    A("v_cndmask_b32 v5, v8, 0, vcc") if False else A("v_sub_u32 v5, v8, v4")
    for i in range(8): A(f"v_mov_b32 v{10+i}, 0")
    A(f"v_mov_b32 v18, {f32(-3.0e38)}")
    A("v_mov_b32 v19, 0")
    A(f"s_mov_b32 s70, {f32(0.08838834764831845)}")
    A(f"s_mov_b32 s71, {f32(1.4426950408889634)}")
    A("s_barrier")
    A(f"ds_read_b128 v[6:9], v2 offset:{QL}")
    A("s_waitcnt lgkmcnt(0)")
    def tile(slot, nK, nV, reissue):
        A(f"s_waitcnt vmcnt({nK})")
        for j in range(4):
            r = kreg(slot, j)
            A(f"v_mfma_f32_16x16x32_bf16 v[{20+4*j}:{23+4*j}], v[{r}:{r+3}], v[6:9], 0")
        if reissue: issueK(slot)
        for j in range(4): A(f"v_mov_b32_dpp v{36+j}, v{20+4*j} quad_perm:[0,0,0,0] {DPP}")
        for r in range(1, 4):
            for j in range(4):
                A(f"v_add_f32_dpp v{36+j}, v{20+4*j+r}, v{36+j} quad_perm:[{r},{r},{r},{r}] {DPP}")
        A("v_cvt_pk_bf16_f32 v40, v36, v37"); A("v_cvt_pk_bf16_f32 v41, v38, v39")
        A("v_lshlrev_b32 v36, 16, v40"); A("v_and_b32 v37, 0xffff0000, v40")
        A("v_lshlrev_b32 v38, 16, v41"); A("v_and_b32 v39, 0xffff0000, v41")
        for j in range(4): A(f"v_mul_f32 v{36+j}, s70, v{36+j}")
        A("v_cvt_pk_bf16_f32 v40, v36, v37"); A("v_cvt_pk_bf16_f32 v41, v38, v39")
        A("v_lshlrev_b32 v36, 16, v40"); A("v_and_b32 v37, 0xffff0000, v40")
        A("v_lshlrev_b32 v38, 16, v41"); A("v_and_b32 v39, 0xffff0000, v41")
        A("v_max3_f32 v42, v36, v37, v38")
        A("v_max_f32 v42, v42, v39")
        A("v_mul_f32 v42, s71, v42")
        A("v_max_f32 v42, v42, v18")
        xrow("v_max_f32", 42, 43)
        A("v_sub_f32 v43, v18, v42")
        A("v_exp_f32 v43, v43")
        A("v_mov_b32 v18, v42")
        for j in range(4): A(f"v_fma_f32 v{36+j}, v{36+j}, s71, -v42")
        for j in range(4): A(f"v_exp_f32 v{36+j}, v{36+j}")
        for i in range(8): A(f"v_mul_f32 v{10+i}, v{10+i}, v43")
        A("v_add_f32 v44, v36, v37"); A("v_add_f32 v45, v38, v39")
        A("v_fma_f32 v19, v19, v43, v44"); A("v_add_f32 v19, v19, v45")
        for j in range(4): A(f"v_cvt_pk_bf16_f32 v{36+j}, v{36+j}, v{36+j}")
        for j in range(4):
            A(f"v_and_b32 v{48+2*j}, v{36+j}, v4"); A(f"v_and_b32 v{49+2*j}, v{36+j}, v5")
        A(f"s_waitcnt vmcnt({nV})")
        for j in range(4):
            r = vreg(slot, j)
            A(f"v_mfma_f32_16x16x16_bf16 v[10:13], v[{r}:{r+1}], v[{48+2*j}:{49+2*j}], v[10:13]")
            A(f"v_mfma_f32_16x16x16_bf16 v[14:17], v[{r+2}:{r+3}], v[{48+2*j}:{49+2*j}], v[14:17]")
        if reissue: issueV(slot)
    q = list(groups)
    def run_tile(slot, reissue):
        assert q[0] == ('K', slot) and q[1] == ('V', slot), (q, slot)
        nK = 4 * (len(q) - 1)
        q.pop(0)
        if reissue: q.append(('K', slot))
        nV = 4 * (len(q) - 1)
        q.pop(0)
        if reissue: q.append(('V', slot))
        tile(slot, min(nK, 63), min(nV, 63), reissue)
    run_tile(0, True); run_tile(1, True)
    for s in range(2, NSLOT): run_tile(s, False)
    nloop = (NT - NSLOT - 2) // 2
    assert (NT - NSLOT) % 2 == 0
    A(f"s_mov_b32 s72, {nloop}")
    LAB("L_main")
    run_tile(0, True); run_tile(1, True)
    A("s_sub_u32 s72, s72, 1")
    A("s_cmp_lg_u32 s72, 0")
    A("s_cbranch_scc1 L_main")
    run_tile(0, False); run_tile(1, False)
    xrow("v_add_f32", 19, 43)
    A("v_bfe_u32 v40, v1, 2, 2")
    A(f"v_mul_u32_u24 v41, {PWH}, v40")
    A("v_lshrrev_b32 v42, 4, v1"); A("v_lshlrev_b32 v42, 7, v42")
    A("v_and_b32 v43, 3, v1"); A("v_lshlrev_b32 v43, 2, v43")
    A("v_add3_u32 v41, v41, v42, v43")
    A(f"s_mul_i32 s73, s64, {PWW}")
    A("v_add_u32 v41, s73, v41")
    for r in range(4):
        A(f"ds_write_b32 v41, v{10+r} offset:{PW + r*32}")
        A(f"ds_write_b32 v41, v{14+r} offset:{PW + r*32 + 16}")
    A("v_lshlrev_b32 v40, 3, v40")
    A("s_lshl_b32 s73, s64, 5")
    A("v_add_u32 v40, s73, v40")
    A(f"ds_write_b64 v40, v[18:19] offset:{ML}")
    A("v_lshrrev_b32 v44, 5, v1"); A("s_lshl_b32 s73, s64, 1"); A("v_add_u32 v44, s73, v44")
    A("v_lshlrev_b32 v45, 3, v44")
    A(f"v_mul_u32_u24 v46, {PWH}, v44")
    A("v_and_b32 v47, 31, v1"); A("v_lshlrev_b32 v47, 4, v47")
    A("v_add_u32 v46, v46, v47")
    A("v_lshlrev_b32 v48, 14, v44"); A("v_add_u32 v48, v48, v47")
    A("v_lshlrev_b32 v49, 8, v44")
    A("s_lshl_b32 s69, s63, 7"); A("s_lshl_b32 s73, s62, 3"); A("s_add_u32 s69, s69, s73"); A("s_add_u32 s69, s69, s30")
    A("s_lshl_b32 s74, s69, 9"); A(f"s_add_u32 s74, s74, {P1OFF}")
    A("s_lshl_b32 s75, s69, 3"); A(f"s_add_u32 s75, s75, {STOFF}")
    A("s_waitcnt lgkmcnt(0)")
    A("s_barrier")
    A("s_cmp_ge_u32 s64, 2"); A("s_cbranch_scc1 L_end")
    for w in range(4): A(f"ds_read_b64 v[{64+2*w}:{65+2*w}], v45 offset:{ML + w*32}")
    for w in range(4): A(f"ds_read_b128 v[{72+4*w}:{75+4*w}], v46 offset:{PW + w*PWW}")
    A("s_waitcnt lgkmcnt(4)")
    A("v_max3_f32 v90, v64, v66, v68"); A("v_max_f32 v90, v90, v70")
    for w in range(4): A(f"v_sub_f32 v{92+w}, v{64+2*w}, v90")
    for w in range(4): A(f"v_exp_f32 v{92+w}, v{92+w}")
    A("v_mul_f32 v91, v92, v65")
    for w in range(1, 4): A(f"v_fmac_f32 v91, v{92+w}, v{65+2*w}")
    A("s_waitcnt lgkmcnt(0)")
    for c in range(4): A(f"v_mul_f32 v{96+c}, v92, v{72+c}")
    for w in range(1, 4):
        for c in range(4): A(f"v_fmac_f32 v{96+c}, v{92+w}, v{72+4*w+c}")
    A("buffer_store_dwordx4 v[96:99], v48, s[40:43], s74 offen sc1")
    A("s_mov_b32 exec_lo, 1"); A("s_mov_b32 exec_hi, 1")
    A("buffer_store_dwordx2 v[90:91], v49, s[40:43], s75 offen sc1")
    LAB("L_end")
    A("s_endpgm")
    L.append('.section .rodata,"a"'); L.append(".p2align 6"); L.append(f".amdhsa_kernel {KNAME}")
    L.append("  .amdhsa_next_free_vgpr 256")
    L.append("  .amdhsa_next_free_sgpr 96")
    L.append("  .amdhsa_accum_offset 256")
    L.append("  .amdhsa_group_segment_fixed_size 0")
    L.append("  .amdhsa_kernarg_size 104")
    L.append("  .amdhsa_user_sgpr_count 2")
    L.append("  .amdhsa_user_sgpr_kernarg_segment_ptr 1")
    L.append("  .amdhsa_system_sgpr_workgroup_id_x 1")
    L.append(".end_amdhsa_kernel")
    out = fix_hazards(L)
    open(name + ".s", "w").write("\n".join(out) + "\n")
    return name + ".s"

if __name__ == "__main__":
    import build
    cfgs = eval(open(sys.argv[1]).read())
    man = ""
    for c in cfgs:
        nm = "m_" + "_".join(f"{k}{str(v).replace(' ','')}" for k, v in c.items())
        p = gen(name=nm, **c)
        man += build.build("work/" + p, 256 if c.get('STAMPS') else 0)
    open("man.txt", "w").write(man)
```
